```python
import torch

def _softmax(x, axis=-1):
    return torch.softmax(x, dim=axis)
def _gelu(x):
    return torch.nn.functional.gelu(x, approximate="tanh")
def _silu(x):
    return torch.nn.functional.silu(x)
def _sigmoid(x):
    return torch.sigmoid(x)
def _layernorm(x, axis=-1, eps=1e-5):
    m = x.mean(dim=axis, keepdim=True)
    v = x.var(dim=axis, keepdim=True, unbiased=False)
    return (x - m) / torch.sqrt(v + eps)
def _scatter_add(tgt, idx, src, axis=0):
    return tgt.clone().index_add_(axis, idx, src)
def _segment_sum(src, seg, n):
    out = torch.zeros((n,) + src.shape[1:], dtype=src.dtype)
    return out.index_add_(0, seg, src)
def _pad(x, pw):
    flat = tuple(v for pair in reversed(pw) for v in pair)
    return torch.nn.functional.pad(x, flat)

kernel_name = 'interleave_layers__ssm_conv_h3__mixer_channel_mlp__prompt'

def setup_inputs():

    _w = (lambda a: (lambda t: t.to(torch.bfloat16) if t.is_floating_point() else t)(torch.as_tensor(a)))
    def _A_setup():
        B, S, D = 1, 2048, 448
        ks = 4
        return {
            "q": _w((lambda *s: torch.randn(*s, dtype=torch.bfloat16) * 0.05)(B, S, D)),
            "k": _w((lambda *s: torch.randn(*s, dtype=torch.bfloat16) * 0.4)(B, S, D)),
            "v": _w((lambda *s: torch.randn(*s, dtype=torch.bfloat16) * 0.4)(B, S, D)),
            "shift_k": _w((lambda *s: torch.randn(*s, dtype=torch.bfloat16) * 0.4)(D, ks) * 0.5),
            "ssm_k": _w((lambda *s: torch.randn(*s, dtype=torch.bfloat16) * 0.4)(D, S) * (1.0 / S ** 0.5)),
            "ssm_D": _w((lambda *s: torch.randn(*s, dtype=torch.bfloat16) * 0.4)(D)),
        }
    _A_in = _A_setup()

    def _B_setup():
        B, S, D, F = 1, 2048, 448, 1792
        return {
            "x": _w((lambda *s: torch.randn(*s, dtype=torch.bfloat16) * 0.05)(B, S, D)),
            "w1": _w((lambda *s: torch.randn(*s, dtype=torch.bfloat16) * 0.8)(D, F) * (D ** -0.5)),
            "b1": _w((lambda *s: torch.randn(*s, dtype=torch.bfloat16) * 0.8)(F)),
            "w2": _w((lambda *s: torch.randn(*s, dtype=torch.bfloat16) * 0.8)(F, D) * (F ** -0.5)),
            "b2": _w((lambda *s: torch.randn(*s, dtype=torch.bfloat16) * 0.2)(D)),
        }
    _B_in = _B_setup()

    return {
        "A_q": _A_in["q"],
        "A_k": _A_in["k"],
        "A_v": _A_in["v"],
        "A_shift_k": _A_in["shift_k"],
        "A_ssm_k": _A_in["ssm_k"],
        "A_ssm_D": _A_in["ssm_D"],
        "B_x": _B_in["x"],
        "B_w1": _B_in["w1"],
        "B_b1": _B_in["b1"],
        "B_w2": _B_in["w2"],
        "B_b2": _B_in["b2"],
    }

def reference(A_q, A_k, A_v, A_shift_k, A_ssm_k, A_ssm_D, B_x, B_w1, B_b1, B_w2, B_b2):
    def _A_ref(q, k, v, shift_k, ssm_k, ssm_D):
        B, S, D = q.shape
        ks = shift_k.shape[-1]
        k_pad = _pad(k, ((0, 0), (ks - 1, 0), (0, 0)))
        k_shift = torch.zeros_like(k)
        for t in range(ks):
            k_shift = k_shift + k_pad[:, t:t + S, :] * shift_k[:, ks - 1 - t][None, None, :]
        kv = k_shift * v
        L = 2 * S
        kv_pad = _pad(kv, ((0, 0), (0, S), (0, 0)))
        kf_pad = _pad(ssm_k, ((0, 0), (0, S)))
        kv_f = (lambda x, axes=(-2,-1): torch.fft.rfft2(x.float(), dim=axes))(kv_pad[:, None, :, :], axes=(1, 2))
        kf_f = (lambda x, axes=(-2,-1): torch.fft.rfft2(x.float(), dim=axes))(kf_pad[:, None, :], axes=(1, 2))
        kf_f = (lambda x, *d: x.permute(*d))(kf_f, 1, 2, 0)
        y_f = kv_f * kf_f[None, :, :, :]
        y = (lambda x, s, axes=(-2,-1): torch.fft.irfft2(x, s=s, dim=axes).to(torch.bfloat16))(y_f, (1, L), axes=(1, 2))[:, 0, :S, :]
        y = y + kv * ssm_D[None, None, :]
        return q * y

    def _B_ref(x, w1, b1, w2, b2):
        y = _layernorm(x, axis=-1)
        h = _gelu(torch.einsum("bsd,df->bsf", y, w1) + b1)
        return torch.einsum("bsf,fd->bsd", h, w2) + b2

    x = A_q
    x = x + _A_ref(_layernorm(x, axis=-1), A_k, A_v, A_shift_k, A_ssm_k, A_ssm_D)
    x = x + _B_ref(_layernorm(x, axis=-1), B_w1, B_b1, B_w2, B_b2)
    x = x + _A_ref(_layernorm(x, axis=-1), A_k, A_v, A_shift_k, A_ssm_k, A_ssm_D)
    x = x + _B_ref(_layernorm(x, axis=-1), B_w1, B_b1, B_w2, B_b2)
    return x
```

```python
import re

TRANS = ("v_exp_f32", "v_log_f32", "v_rcp_f32", "v_rsq_f32", "v_sqrt_f32", "v_sin_f32", "v_cos_f32", "v_rcp_iflag_f32")
NODST_S = ("s_cmp", "s_cbranch", "s_branch", "s_waitcnt", "s_barrier", "s_nop", "s_setprio", "s_endpgm",
           "s_sleep", "s_bitcmp", "s_setreg", "s_sendmsg")
REG_RE = re.compile(r"^(-|\|)?([vas])(?:(\d+)|\[(\d+):(\d+)\])\|?$")


def regs_of(tok):
    tok = tok.strip()
    if tok in ("vcc",):
        return [("s", "vcc_lo"), ("s", "vcc_hi")]
    if tok in ("vcc_lo", "vcc_hi", "m0"):
        return [("s", tok)]
    if tok == "exec":
        return [("s", "exec_lo"), ("s", "exec_hi")]
    if tok in ("exec_lo", "exec_hi"):
        return [("s", tok)]
    m = REG_RE.match(tok)
    if not m:
        return []
    c = m.group(2)
    if m.group(3) is not None:
        return [(c, int(m.group(3)))]
    return [(c, i) for i in range(int(m.group(4)), int(m.group(5)) + 1)]


def split_ops(s):
    out, depth, cur = [], 0, ""
    for ch in s:
        if ch in "[(":
            depth += 1
        if ch in "])":
            depth -= 1
        if ch == "," and depth == 0:
            out.append(cur.strip()); cur = ""
        else:
            cur += ch
    if cur.strip():
        out.append(cur.strip())
    return out


class Ins:
    __slots__ = ("text", "op", "kind", "rd", "wr", "pr", "pw", "ops", "mods", "passes", "srcC", "srcAB",
                 "target", "dpp", "wide_store", "store_data", "cmask", "nwait", "tag")

    def __init__(self, text, pr=(), pw=(), tag=None):
        self.text = text.strip()
        self.pr, self.pw = set(pr), set(pw)
        self.tag = tag
        self.rd, self.wr = set(), set()
        self.passes = 0; self.srcC = set(); self.srcAB = set(); self.target = None
        self.dpp = False; self.wide_store = False; self.store_data = set(); self.nwait = 1
        t = self.text
        if t.endswith(":"):
            self.op = "label"; self.kind = "label"; self.target = t[:-1]; self.nwait = 0; self.ops = []; self.mods = ""
            return
        if t.startswith(".") or t.startswith(";"):
            self.op = "dir"; self.kind = "dir"; self.nwait = 0; self.ops = []; self.mods = ""
            return
        sp = t.split(None, 1)
        op = sp[0]
        rest = sp[1] if len(sp) > 1 else ""
        self.op = op
        ops = split_ops(rest)
        mods = ""
        if ops and not op.startswith("s_waitcnt"):
            last = ops[-1].split(None, 1)
            if len(last) > 1:
                ops[-1] = last[0]; mods = last[1]
        self.ops, self.mods = ops, mods
        R = lambda i: regs_of(ops[i]) if i < len(ops) else []
        allr = lambda a: [r for i in range(a, len(ops)) for r in R(i)]
        base = re.sub(r"_(e32|e64|dpp|sdwa)$", "", op)
        if op.startswith("v_mfma"):
            self.kind = "mfma"
            self.passes = 8 if "32x32" in op else 4
            self.wr.update(R(0)); self.srcAB = set(R(1) + R(2)); self.srcC = set(R(3))
            self.rd.update(self.srcAB | self.srcC)
        elif op.startswith("v_"):
            self.kind = "trans" if base in TRANS else "valu"
            if "_co_" in op:
                self.wr.update(R(0) + R(1)); self.rd.update(allr(2))
            elif "permlane" in op and "swap" in op:
                self.wr.update(R(0) + R(1)); self.rd.update(R(0) + R(1))
            elif op == "v_nop":
                pass
            else:
                self.wr.update(R(0)); self.rd.update(allr(1))
            if base.startswith(("v_fmac", "v_mac", "v_pk_fmac", "v_dot2c", "v_writelane")):
                self.rd.update(R(0))
            if re.search(r"quad_perm|row_|wave_|_dpp", t):
                self.dpp = True; self.rd.update(R(0))
            if "UNUSED_PRESERVE" in mods:
                self.rd.update(R(0))
            if base == "v_cndmask_b32" and len(ops) == 3:
                self.rd.update(regs_of("vcc"))
        elif op.startswith(("s_load", "s_buffer_load", "s_memtime", "s_memrealtime")):
            self.kind = "smem"
            self.wr.update(R(0)); self.rd.update(allr(1))
        elif op.startswith("s_"):
            self.kind = "salu"
            if op.startswith("s_waitcnt"):
                self.kind = "wait"
            elif op == "s_barrier":
                self.kind = "barrier"
            elif op.startswith(("s_cbranch", "s_branch")):
                self.kind = "branch"; self.target = ops[0]
                if "vcc" in op: self.rd.update(regs_of("vcc"))
                if "exec" in op: self.rd.update(regs_of("exec"))
            elif op == "s_nop":
                self.nwait = int(ops[0], 0) + 1
            elif op == "s_endpgm":
                self.kind = "end"
            if op.startswith(NODST_S):
                self.rd.update(allr(0)) if self.kind == "salu" else None
            else:
                self.wr.update(R(0)); self.rd.update(allr(1))
                if "saveexec" in op:
                    self.wr.update(regs_of("exec")); self.rd.update(regs_of("exec"))
                if op.startswith(("s_addk", "s_mulk", "s_cmov", "s_bitset")):
                    self.rd.update(R(0))
        elif op.startswith(("buffer_load", "global_load")):
            lds = bool(re.search(r"\blds\b", mods)) or "_lds_" in op
            if lds:
                self.kind = "dma"; self.rd.update(allr(0)); self.rd.add(("s", "m0"))
            else:
                self.kind = "vload"; self.wr.update(R(0)); self.rd.update(allr(1))
                if "d16" in op: self.rd.update(R(0))
        elif op.startswith(("buffer_store", "global_store")):
            self.kind = "vstore"; self.rd.update(allr(0))
            di = 0 if op.startswith("buffer") else 1
            self.store_data = set(R(di)); self.wide_store = op.endswith(("x3", "x4"))
        elif op.startswith(("buffer_atomic", "global_atomic")):
            self.kind = "vstore"; self.rd.update(allr(0))
            assert "sc0" not in mods
        elif op.startswith(("buffer_inv", "buffer_wbl2")):
            self.kind = "vstore"
        elif op.startswith(("ds_read", "ds_bpermute", "ds_permute", "ds_swizzle")):
            self.kind = "dsread"; self.wr.update(R(0)); self.rd.update(allr(1))
        elif op.startswith("ds_"):
            self.kind = "dswrite"; self.rd.update(allr(0))
        else:
            raise ValueError("unknown instruction: " + t)

    def is_valu(self):
        return self.kind in ("valu", "trans")

    def is_vmem(self):
        return self.kind in ("vload", "vstore", "dma")

    def is_mem(self):
        return self.kind in ("vload", "vstore", "dma", "dsread", "dswrite")


def sgprs(s):
    return {r for r in s if r[0] == "s"}


def vgprs(s):
    return {r for r in s if r[0] != "s"}


def hazard_need(p, c):
    n = 0
    if p.kind == "mfma":
        big = p.passes == 8
        D = p.wr
        if c.kind == "mfma":
            if c.srcAB & D: n = max(n, 12 if big else 8)
            if c.srcC & D and not (c.srcC == D and c.passes == p.passes): n = max(n, 10 if big else 6)
            if c.wr & D and not (c.srcC == D and c.passes == p.passes): n = max(n, 10 if big else 6)
        elif c.is_valu() or c.is_mem():
            if (c.rd | c.wr) & D: n = max(n, 12 if big else 8)
            if c.wr & p.srcC: n = max(n, 7 if big else 3)
        return n
    if p.is_valu():
        pv, ps = vgprs(p.wr), sgprs(p.wr)
        if c.kind == "mfma" and c.rd & pv: n = max(n, 2)
        if c.is_valu():
            if c.dpp and c.rd & pv: n = max(n, 2)
            if "permlane" in c.op and c.rd & pv: n = max(n, 2)
            if c.op.startswith(("v_readlane", "v_readfirstlane")) and c.rd & pv: n = max(n, 1)
            if c.rd & ps: n = max(n, 4 if c.op.startswith(("v_readlane", "v_writelane")) else 2)
            if p.kind == "trans" and c.rd & pv: n = max(n, 1)
            if ("op_sel" in p.mods or "sdwa" in p.op or "dst_sel" in p.mods) and not p.op.startswith("v_pk_") \
                    and (c.rd | c.wr) & pv: n = max(n, 1)
        if p.kind == "trans" and c.is_mem() and c.rd & pv: n = max(n, 1)
        if c.is_vmem() and c.rd & ps: n = max(n, 5)
        ex = {("s", "exec_lo"), ("s", "exec_hi")}
        if ps & ex and (c.is_valu() or c.kind == "mfma"): n = max(n, 5)
        return n
    if p.kind == "salu":
        if ("s", "m0") in p.wr and c.kind == "dma": n = max(n, 1)
        return n
    if p.kind == "vstore" and p.wide_store:
        if c.wr & p.store_data: n = max(n, 2 if c.is_valu() or c.kind == "mfma" else 1)
        return n
    return n


class State:
    def __init__(self):
        self.vm, self.lg = {}, {}
        self.smem = False
        self.hist = []

    def copy(self):
        s = State(); s.vm = dict(self.vm); s.lg = dict(self.lg); s.smem = self.smem; s.hist = list(self.hist)
        return s

    def merge(self, o):
        ch = False
        for mine, oth in ((self.vm, o.vm), (self.lg, o.lg)):
            for k, v in oth.items():
                if k not in mine or mine[k] > v:
                    mine[k] = v; ch = True
        if o.smem and not self.smem:
            self.smem = True; ch = True
        have = {id(i): d for i, d in self.hist}
        for i, d in o.hist:
            if id(i) not in have or have[id(i)] > d:
                self.hist = [(a, b) for a, b in self.hist if a is not i] + [(i, d)]; ch = True
        return ch


WAIT_RE = re.compile(r"(vmcnt|lgkmcnt|expcnt)\((\d+)\)")


def apply_wait(st, vm, lg):
    if vm is not None:
        st.vm = {k: v for k, v in st.vm.items() if v < vm}
    if lg is not None:
        if lg == 0:
            st.lg = {}; st.smem = False
        elif not st.smem:
            st.lg = {k: v for k, v in st.lg.items() if v < lg}


def advance(st, ins):
    n = ins.nwait
    st.hist = [(a, d + n) for a, d in st.hist if d + n < 14]
    if ins.kind in ("mfma", "valu", "trans", "salu") or (ins.kind == "vstore" and ins.wide_store):
        st.hist.append((ins, 0))


def process(prog):
    entry = {}
    for _ in range(12):
        out, st, changed, live = [], State(), False, True
        for ins in prog:
            if ins.kind == "label":
                if ins.target in entry:
                    if live:
                        st.merge(entry[ins.target])
                    else:
                        st = entry[ins.target].copy()
                elif not live:
                    st = State()
                live = True
                out.append(ins.text); continue
            if ins.kind == "dir":
                out.append(ins.text); continue
            if ins.kind == "wait":
                d = {k: int(v) for k, v in WAIT_RE.findall(ins.text)}
                apply_wait(st, d.get("vmcnt"), d.get("lgkmcnt"))
                advance(st, ins); out.append(ins.text); continue
            touch = ins.rd | ins.wr
            keys = [("r", r) for r in touch] + [("pw", p) for p in (ins.pr | ins.pw)] + [("pr", p) for p in ins.pw]
            vm = min((st.vm[k] for k in keys if k in st.vm), default=None)
            lgk = [k for k in keys if k in st.lg]
            if ins.kind in ("dsread", "dswrite"):
                lgk = [k for k in lgk if k[0] == "r"]
                if ins.kind == "dsread" and not st.smem:
                    lgk = [k for k in lgk if k[1] in ins.rd]
            if ins.kind == "vload":
                vk = [k for k in keys if k in st.vm and not (k[0] == "r" and k[1] in ins.wr and k[1] not in ins.rd)]
                vm = min((st.vm[k] for k in vk), default=None)
            lg = min((st.lg[k] for k in lgk), default=None)
            if lg is not None and st.smem:
                lg = 0
            if vm is not None or lg is not None:
                parts = []
                if vm is not None: vm = min(vm, 63); parts.append(f"vmcnt({vm})")
                if lg is not None: lg = min(lg, 15); parts.append(f"lgkmcnt({lg})")
                w = Ins("s_waitcnt " + " ".join(parts))
                apply_wait(st, vm, lg); advance(st, w); out.append(w.text)
            need = max((hazard_need(p, ins) - d for p, d in st.hist), default=0)
            if need > 0:
                w = Ins(f"s_nop {need - 1}"); advance(st, w); out.append(w.text)
            if ins.is_vmem():
                for k in st.vm: st.vm[k] += 1
                for r in ins.wr: st.vm[("r", r)] = 0
                for p in ins.pw: st.vm[("pw", p)] = 0
                for p in ins.pr: st.vm[("pr", p)] = 0
            elif ins.kind in ("dsread", "dswrite", "smem"):
                for k in st.lg: st.lg[k] += 1
                for r in ins.wr: st.lg[("r", r)] = 0
                for p in ins.pw: st.lg[("pw", p)] = 0
                for p in ins.pr: st.lg[("pr", p)] = 0
                if ins.kind == "smem": st.smem = True
            advance(st, ins)
            out.append(ins.text)
            if ins.kind == "branch":
                t = ins.target
                if t not in entry:
                    entry[t] = st.copy(); changed = True
                elif entry[t].merge(st):
                    changed = True
                if ins.op == "s_branch": live = False
            if ins.kind == "end": live = False
        if not changed:
            return out
    raise RuntimeError("waitcnt fixpoint did not converge")


class Gen:
    def __init__(self):
        self.stack = [[]]
        self.nlab = 0

    def __call__(self, text, pr=(), pw=(), tag=None):
        for line in text.strip().split("\n"):
            line = line.split("//")[0].strip()
            if line:
                self.stack[-1].append(Ins(line, pr, pw, tag))

    def emit(self, lst):
        self.stack[-1].extend(lst)

    def label(self, stem="L"):
        self.nlab += 1
        return f"{stem}_{self.nlab}"

    def cap(self, fn, *a, **k):
        self.stack.append([])
        fn(*a, **k)
        return self.stack.pop()

    def lines(self):
        return process(self.stack[0])


def weave(main, fill, per, start=0, is_anchor=lambda i: i.kind == "mfma"):
    out, k, acc, na = [], 0, 0.0, 0
    for i in main:
        out.append(i)
        if is_anchor(i):
            na += 1
            if na > start:
                acc += per
                while acc >= 1 and k < len(fill):
                    out.append(fill[k]); k += 1; acc -= 1
    out.extend(fill[k:])
    return out


class Alloc:
    def __init__(self, cls, lo, hi):
        self.cls, self.free_ = cls, set(range(lo, hi))

    def get(self, n=1, align=None):
        align = align or (2 if n > 1 else 1)
        for s in sorted(self.free_):
            if s % align == 0 and all(s + i in self.free_ for i in range(n)):
                for i in range(n): self.free_.discard(s + i)
                return Reg(self.cls, s, n)
        raise RuntimeError(f"out of {self.cls} registers for {n}")

    def put(self, *rs):
        for r in rs:
            for i in range(r.n):
                assert r.i + i not in self.free_
                self.free_.add(r.i + i)


class Reg:
    def __init__(self, cls, i, n=1):
        self.cls, self.i, self.n = cls, i, n

    def __str__(self):
        return f"{self.cls}{self.i}" if self.n == 1 else f"{self.cls}[{self.i}:{self.i + self.n - 1}]"

    def __getitem__(self, k):
        if isinstance(k, slice):
            a = k.start or 0
            b = self.n if k.stop is None else k.stop
            assert 0 <= a < b <= self.n
            return Reg(self.cls, self.i + a, b - a)
        assert 0 <= k < self.n
        return Reg(self.cls, self.i + k, 1)
```

```python
import sys, math
from asmgen import *

NAME = "interleave_layers__ssm_conv_h3__mixer_channel_mlp__prompt"
WS_U, WS_Y, WS_ST, WS_FL, WS_Z, WS_H = 0x10000, 0x400000, 0x800000, 0xA00000, 0xB00000, 0x1000000
OOB = 0x80000000
L_HC, L_EX, L_U = 0, 66560, 82944
L_Z, L_MISC, LDS_BYTES = 98304, 159744, 163840
POLL_LIMIT = 1 << 16
K1 = -2.0 * math.sqrt(2.0 / math.pi) * math.log2(math.e)
K2 = K1 * 0.044715


def f2u(x):
    import struct
    return "0x%08x" % struct.unpack("<I", struct.pack("<f", x))[0]


class K:
    def __init__(self, st="sc1", prof=False):
        self.g = Gen()
        self.st, self.prof = st, prof
        self.v = Alloc("v", 1, 256)
        self.s = Alloc("s", 56, 102)
        self.nstamp = 0
        v = self.v
        self.l16, self.xa, self.yP, self.vt2 = v.get(), v.get(16), v.get(8), v.get(2)
        (self.vtag, self.vrow, self.vzs, self.vzr, self.vb1a, self.vb2a, self.vrw, self.vrr, self.vfl, self.vf0,
         self.vk2) = [v.get() for _ in range(11)]
        top = lambda i, n=1: (v.free_.difference_update(range(i, i + n)), Reg("v", i, n))[1]
        self.lane, self.vd1, self.vd2, self.vt1 = top(159), top(158), top(155), top(156, 2)
        S = lambda i: Reg("s", i, 4)
        (self.K, self.V, self.SH, self.HK, self.WS, self.Q, self.W1, self.W2, self.B1, self.B2, self.DD,
         self.OUT, self.DBG) = [S(4 + 4 * i) for i in range(13)]
        self.w1 = lambda ks, ft: Reg("a", 8 * ks + 4 * ft, 4)
        if prof:
            self.stamps = [self.s.get(2, 2)] + [Reg("s", i, 2) for i in list(range(4, 20, 2)) + list(range(36, 48, 2)) + [24, 26]]

    def stamp(self):
        if self.prof:
            n = self.nstamp; self.nstamp += 1
            self.g(f"s_memtime {self.stamps[n]}")

    def prologue(self):
        g, s, v = self.g, self.s, self.v
        g("s_cmp_ge_u32 s2, 256\ns_cbranch_scc1 L_exit")
        self.stamp()
        srds = [(self.K, 8, 1835008), (self.V, 16, 1835008), (self.SH, 24, 3584), (self.WS, 104, 0x10000000),
                (self.HK, 32, 1835008), (self.Q, 0, 1835008), (self.W1, 56, 1605632), (self.W2, 72, 1605632),
                (self.B1, 64, 3584), (self.B2, 80, 896), (self.DD, 40, 896), (self.OUT, 88, 1835008)]
        if self.prof: srds.append((self.DBG, 96, 256))
        for r, off, _ in srds:
            g(f"s_load_dwordx2 {r[0:2]}, s[0:1], {off}")
        for r, _, sz in srds:
            g(f"s_mov_b32 {r[2]}, {sz}\ns_mov_b32 {r[3]}, 0x20000")
        self.x, self.j, self.w, self.m, self.C = [s.get() for _ in range(5)]
        self.t0, self.t1, self.cnt, self.tag = [s.get() for _ in range(4)]
        t = v.get()
        g(f"""
        s_and_b32 {self.x}, s2, 7
        s_lshr_b32 {self.j}, s2, 3
        v_lshrrev_b32 {t}, 6, v0
        v_and_b32 {self.lane}, 63, v0
        v_readfirstlane_b32 {self.w}, {t}
        v_lshlrev_b32 {self.l16}, 4, {self.lane}
        s_mul_i32 {self.t0}, {self.j}, 37
        s_lshr_b32 {self.t0}, {self.t0}, 8
        s_mul_i32 {self.t1}, {self.t0}, 7
        s_sub_u32 {self.m}, {self.j}, {self.t1}
        s_lshl2_add_u32 {self.C}, {self.x}, {self.t0}
        """)
        v.put(t)

    def t_loads(self):
        g, s, v = self.g, self.s, self.v
        self.tk, self.tv, self.tc = v.get(11), v.get(8), v.get(4)
        va, vh, p, c, vs = [v.get() for _ in range(5)]
        self.ua = v.get()
        c4480 = s.get()
        g(f"""
        v_and_b32 {c}, 7, v0
        v_lshrrev_b32 {p}, 3, v0
        s_mul_i32 {self.t0}, {self.j}, {64 * 896}
        s_mul_i32 {self.t1}, {self.x}, 112
        s_add_u32 {self.t0}, {self.t0}, {self.t1}
        v_mul_u32_u24 {va}, {8 * 896}, {c}
        v_lshl_add_u32 {va}, {p}, 2, {va}
        v_add_u32 {va}, {self.t0}, {va}
        v_cmp_gt_u32 vcc, 28, {p}
        v_mov_b32 {vh}, {OOB}
        v_lshlrev_b32 {self.ua}, 14, {p}
        v_cndmask_b32 {va}, {vh}, {va}, vcc
        v_lshl_add_u32 {self.ua}, {c}, 4, {self.ua}
        v_cndmask_b32 {self.ua}, {vh}, {self.ua}, vcc
        v_subrev_u32 {vh}, 2688, {va}
        s_mov_b32 {c4480}, 4480
        v_lshlrev_b32 {vs}, 4, {p}
        s_mul_i32 {self.t1}, {self.x}, 448
        """)
        g(f"buffer_load_dword {self.vtag}, off, {self.WS}, 0 sc0 sc1")
        g(f"buffer_load_dwordx4 {self.tc}, {vs}, {self.SH}, {self.t1} offen")
        for i in range(3):
            g(f"buffer_load_dword {self.tk[i]}, {vh}, {self.K}, 0 offen offset:{896 * i}")
        for i in range(8):
            so, im = ("0", 896 * i) if i < 5 else (c4480, 896 * (i - 5))
            g(f"buffer_load_dword {self.tk[3 + i]}, {va}, {self.K}, {so} offen offset:{im}")
            g(f"buffer_load_dword {self.tv[i]}, {va}, {self.V}, {so} offen offset:{im}")
        v.put(va, vh, p, c, vs); s.put(c4480)

    def t_compute(self):
        g, s, v = self.g, self.s, self.v
        kk, ww, u, gr, vv = v.get(22), v.get(8), v.get(16), v.get(16), v.get(2)
        msk = s.get(); self.msk = msk
        g(f"s_mov_b32 {msk}, 0xffff0000")
        for i in range(4):
            for e in range(2):
                src = self.tc[2 * e + (i >> 1)]
                g(f"v_and_b32 {ww[2 * i + e]}, {msk}, {src}" if i & 1 else f"v_lshlrev_b32 {ww[2 * i + e]}, 16, {src}")
        def unp(r):
            g(f"v_lshlrev_b32 {kk[2 * r]}, 16, {self.tk[r]}\nv_and_b32 {kk[2 * r + 1]}, {msk}, {self.tk[r]}")
        for r in range(3): unp(r)
        for t in range(8):
            unp(t + 3)
            ut = u[2 * t:2 * t + 2]
            g(f"v_pk_mul_f32 {ut}, {kk[2 * t:2 * t + 2]}, {ww[6:8]}")
            g(f"v_lshlrev_b32 {vv[0]}, 16, {self.tv[t]}")
            g(f"v_pk_fma_f32 {ut}, {kk[2 * t + 2:2 * t + 4]}, {ww[4:6]}, {ut}")
            g(f"v_and_b32 {vv[1]}, {msk}, {self.tv[t]}")
            g(f"v_pk_fma_f32 {ut}, {kk[2 * t + 4:2 * t + 6]}, {ww[2:4]}, {ut}")
            g(f"v_pk_fma_f32 {ut}, {kk[2 * t + 6:2 * t + 8]}, {ww[0:2]}, {ut}")
            g(f"v_pk_mul_f32 {ut}, {ut}, {vv}")
        g(f"v_add_u32 {self.vtag}, 1, {self.vtag}")
        g(f"""
        s_mul_i32 {self.t0}, {self.x}, {28 * 16384}
        s_lshl_b32 {self.t1}, {self.j}, 9
        s_add_u32 {self.t0}, {self.t0}, {self.t1}
        s_add_u32 {self.t0}, {self.t0}, {WS_U}
        v_readfirstlane_b32 {self.tag}, {self.vtag}
        """)
        for e in range(2):
            for h in range(2):
                q = gr[8 * e + 4 * h:8 * e + 4 * h + 4]
                for d in range(2):
                    t = 4 * h + 2 * d
                    g(f"v_cvt_pk_bf16_f32 {q[2 * d]}, {u[2 * t + e]}, {u[2 * t + 2 + e]}")
                    g(f"v_mov_b32 {q[2 * d + 1]}, {self.vtag}")
                g(f"buffer_store_dwordx4 {q}, {self.ua}, {self.WS}, {self.t0} offen offset:{256 * e + 128 * h} {self.st}")
        v.put(kk, ww, u, gr, vv, self.tk, self.tv, self.tc, self.ua)

    def early_loads(self):
        g, s, v = self.g, self.s, self.v
        self.hraw = [v.get(8), v.get(8)]
        self.qraw = [v.get(4), v.get(4)]
        self.vD, self.vb1, self.vb2 = v.get(), v.get(), v.get()
        a, b, c = v.get(), v.get(), v.get()
        self.ch0 = s.get()
        g(f"""
        s_mul_i32 {self.ch0}, {self.x}, 56
        s_lshl1_add_u32 {self.ch0}, {self.j}, {self.ch0}
        v_lshlrev_b32 {a}, 4, v0
        v_subrev_u32 {b}, 16, {a}
        v_cmp_ne_u32 vcc, 0, v0
        v_mov_b32 {c}, {OOB}
        s_lshl_b32 {self.t0}, {self.ch0}, 12
        s_add_u32 {self.t1}, {self.t0}, 4096
        v_cndmask_b32 {b}, {c}, {b}, vcc
        """)
        for e, so in ((0, self.t0), (1, self.t1)):
            g(f"buffer_load_dwordx4 {self.hraw[e][0:4]}, {b}, {self.HK}, {so} offen")
            g(f"buffer_load_dwordx4 {self.hraw[e][4:8]}, {a}, {self.HK}, {so} offen")
        g(f"""
        s_lshr_b32 {self.t0}, {self.w}, 1
        s_add_u32 {self.t0}, {self.t0}, {self.ch0}
        s_lshl_b32 {self.t0}, {self.t0}, 1
        buffer_load_ushort {self.vD}, off, {self.DD}, {self.t0}
        v_lshlrev_b32 {a}, 1, v0
        s_lshl_b32 {self.t0}, {self.m}, 9
        buffer_load_ushort {self.vb1}, {a}, {self.B1}, {self.t0} offen
        v_lshlrev_b32 {a}, 1, {self.lane}
        s_lshl_b32 {self.t0}, {self.m}, 7
        buffer_load_ushort {self.vb2}, {a}, {self.B2}, {self.t0} offen
        v_and_b32 {a}, 7, v0
        v_lshrrev_b32 {b}, 3, {self.lane}
        v_mul_u32_u24 {a}, 1792, {a}
        v_lshl_add_u32 {a}, {b}, 4, {a}
        s_lshl2_add_u32 {self.t0}, {self.C}, {self.w}
        s_mul_i32 {self.t0}, {self.t0}, {16 * 896}
        s_lshl_b32 {self.t1}, {self.m}, 7
        s_add_u32 {self.t0}, {self.t0}, {self.t1}
        v_add_u32 {self.vrow}, {self.t0}, {a}
        """)
        for gi in range(2):
            g(f"buffer_load_dwordx4 {self.qraw[gi]}, {self.vrow}, {self.Q}, 0 offen offset:{896 * gi}")
        v.put(a, b, c)

    def wstream_init(self):
        g, s, v = self.g, self.s, self.v
        self.sw1, self.sA, self.sB = s.get(), s.get(), s.get()
        self.m4k = [s.get() for _ in range(7)]
        self.w2b = s.get()
        a, b, c, d = [v.get() for _ in range(4)]
        L = self.lane
        g(f"""
        v_lshrrev_b32 {a}, 3, {L}
        v_lshrrev_b32 {b}, 2, {L}
        v_and_b32 {b}, 4, {b}
        v_and_b32 {c}, 7, {L}
        v_xor_b32 {b}, {b}, {c}
        v_lshlrev_b32 {b}, 4, {b}
        v_mad_u32_u24 {self.vd2}, {a}, {self.c896()}, {b}
        v_lshlrev_b32 {a}, 2, {a}
        v_mad_u32_u24 {self.vd1}, {a}, {self.c896()}, {b}
        s_lshl2_add_u32 {self.t0}, {self.m}, {self.w}
        s_lshl_b32 {self.sw1}, {self.t0}, 7
        s_mul_i32 {self.sA}, {self.w}, 15360
        s_add_u32 {self.sA}, {self.sA}, {L_Z}
        s_mul_i32 {self.sB}, {self.w}, 24576
        s_mul_i32 {self.w2b}, {self.w}, {64 * 896}
        s_lshl_b32 {self.t0}, {self.m}, 7
        s_add_u32 {self.w2b}, {self.w2b}, {self.t0}
        s_lshl_b32 {self.m4k[0]}, {self.m}, 12
        """)
        for mm in range(1, 7):
            g(f"""
            s_add_u32 {self.m4k[mm]}, {self.m4k[mm - 1]}, 4096
            s_cmp_eq_u32 {self.m4k[mm]}, {7 * 4096}
            s_cselect_b32 {self.m4k[mm]}, 0, {self.m4k[mm]}
            """)
        g(f"""
        v_bfe_u32 {a}, {L}, 2, 2
        v_lshlrev_b32 {a}, 7, {a}
        v_bfe_u32 {b}, {L}, 3, 1
        v_lshl_add_u32 {a}, {b}, 6, {a}
        v_lshrrev_b32 {b}, 5, {L}
        v_bfe_u32 {c}, {L}, 4, 1
        v_lshl_add_u32 {self.vt1[0]}, {b}, 10, {a}
        v_lshl_add_u32 {self.vt2[0]}, {b}, 9, {a}
        v_lshl_add_u32 {self.vt1[0]}, {c}, 5, {self.vt1[0]}
        v_lshl_add_u32 {self.vt2[0]}, {c}, 4, {self.vt2[0]}
        v_bfe_u32 {b}, {L}, 1, 1
        v_and_b32 {c}, 1, {L}
        v_lshl_add_u32 {self.vt1[0]}, {b}, 4, {self.vt1[0]}
        v_lshl_add_u32 {self.vt2[0]}, {b}, 3, {self.vt2[0]}
        v_lshl_add_u32 {self.vt1[0]}, {c}, 3, {self.vt1[0]}
        v_lshl_add_u32 {self.vt2[0]}, {c}, 5, {self.vt2[0]}
        v_xor_b32 {self.vt1[1]}, 64, {self.vt1[0]}
        v_xor_b32 {self.vt2[1]}, 64, {self.vt2[0]}
        v_add_u32 {self.vt1[0]}, {self.sA}, {self.vt1[0]}
        v_add_u32 {self.vt1[1]}, {self.sA}, {self.vt1[1]}
        v_add_u32 {self.vt2[0]}, {self.sB}, {self.vt2[0]}
        v_add_u32 {self.vt2[1]}, {self.sB}, {self.vt2[1]}
        """)
        v.put(a, b, c, d)
        self.w2_lds = [kb for kb in range(28) if kb % 7 in (1, 3, 5)]
        regs = [Reg("a", 224 + 8 * i, 8) for i in range(4)] + [Reg("v", 160 + 8 * i, 8) for i in range(12)]
        rk = [kb for kb in range(28) if kb not in self.w2_lds]
        self.w2_reg = dict(zip(rk, regs))
        self.items = [("w1", ks) for ks in range(28)] + [("w2", kb) for kb in rk] + [("w2", kb) for kb in self.w2_lds]
        self.slot = {}
        for n, it in enumerate(self.items):
            self.slot[it] = n % 7 if n < 28 else (n - 28) % 12
        self.n_issue = self.n_read = 0

    def c896(self):
        if not hasattr(self, "s896"):
            self.s896 = self.s.get(); self.g(f"s_mov_b32 {self.s896}, 896")
        return self.s896

    def w_issue(self, n=1):
        g = self.g
        for _ in range(n):
            if self.n_issue >= len(self.items): return
            it = self.items[self.n_issue]; self.n_issue += 1
            sl = self.slot[it]
            for rd in range(2):
                if it[0] == "w1":
                    g(f"s_add_u32 m0, {self.sA}, {sl * 2048 + rd * 1024}")
                    g(f"s_add_u32 {self.t1}, {self.sw1}, {(2 * it[1] + rd) * 8 * 3584}")
                    g(f"buffer_load_dwordx4 {self.vd1}, {self.W1}, {self.t1} offen lds", pw=[f"A{sl}"])
                else:
                    mm, q = it[1] >> 2, it[1] & 3
                    g(f"s_mul_i32 {self.t1}, {self.m4k[mm]}, 56")
                    g(f"s_add_u32 m0, {self.sB}, {sl * 2048 + rd * 1024}")
                    g(f"s_add_u32 {self.t1}, {self.t1}, {self.w2b}")
                    g(f"s_add_u32 {self.t1}, {self.t1}, {(2 * q + rd) * 8 * 896}")
                    g(f"buffer_load_dwordx4 {self.vd2}, {self.W2}, {self.t1} offen lds", pw=[f"B{sl}"])

    def w_read(self, n=1):
        g = self.g
        for _ in range(n):
            if self.n_read >= 44: return
            assert self.n_read < self.n_issue
            it = self.items[self.n_read]; self.n_read += 1
            sl = self.slot[it]
            for t in range(2):
                for rd in range(2):
                    if it[0] == "w1":
                        dst = self.w1(it[1], t)[2 * rd:2 * rd + 2]
                        g(f"ds_read_b64_tr_b16 {dst}, {self.vt1[t]} offset:{sl * 2048 + rd * 512}", pr=[f"A{sl}"])
                    else:
                        dst = self.w2_reg[it[1]][4 * t + 2 * rd:4 * t + 2 * rd + 2]
                        g(f"ds_read_b64_tr_b16 {dst}, {self.vt2[t]} offset:{sl * 2048 + rd * 1024}", pr=[f"B{sl}"])

    def h_copies(self):
        g, s, v = self.g, self.s, self.v
        a, z = v.get(), v.get(4)
        E, O = v.get(14), v.get(14)
        lo = s.get()
        g(f"s_mov_b32 {lo}, 0xffff")
        g(f"v_lshlrev_b32 {a}, 4, v0")
        g(f"v_add_u32 {a}, {L_HC + 16}, {a}")
        for e in range(2):
            W = self.hraw[e]
            for par, dst in ((0, E), (1, O)):
                for k in range(6):
                    for base, i in ((0, 7 - k), (8, 6 - k)):
                        if par:
                            g(f"v_alignbit_b32 {dst[base + k]}, {W[i]}, {W[i]}, 16")
                        else:
                            g(f"v_bfi_b32 {dst[base + k]}, {lo}, {W[i]}, {W[i - 1]}")
                for q, st in ((3, 0), (1, 2), (2, 8), (0, 10)):
                    rho = 2 * q + par
                    g(f"ds_write_b128 {a}, {dst[st:st + 4]} offset:{e * 33280 + rho * 4160}", pw=["HC"])
        b, c = E[0], E[1]
        for i in range(4): g(f"v_mov_b32 {z[i]}, 0")
        g(f"""
        v_and_b32 {b}, 15, v0
        v_mul_u32_u24 {b}, 4160, {b}
        v_and_b32 {c}, 31, v0
        v_min_u32 {c}, 29, {c}
        v_lshlrev_b32 {c}, 4, {c}
        v_bfe_u32 {a}, v0, 5, 1
        v_mul_u32_u24 {a}, 4608, {a}
        v_add_u32 {a}, {a}, {c}
        v_add_u32 {a}, {L_U}, {a}
        """)
        g(f"ds_write_b128 {b}, {z} offset:{L_HC}", pw=["HC"])
        g(f"ds_write_b128 {a}, {z}", pw=["HC"])
        g(f"""
        v_lshlrev_b32 {b}, 2, v0
        v_add_u32 {b}, {L_MISC}, {b}
        v_lshlrev_b32 {self.vb1}, 16, {self.vb1}
        v_lshlrev_b32 {c}, 2, {self.lane}
        v_add_u32 {c}, {L_MISC + 1024}, {c}
        v_lshlrev_b32 {self.vb2}, 16, {self.vb2}
        """)
        g(f"ds_write_b32 {b}, {self.vb1}", pw=["HC"])
        g(f"ds_write_b32 {c}, {self.vb2}", pw=["HC"])
        self.AD = v.get(4)
        L = self.lane
        g(f"""
        v_bfe_u32 {a}, {L}, 3, 1
        v_add_u32 {a}, 2, {a}
        v_lshrrev_b32 {b}, 4, {L}
        v_cmp_eq_u32 vcc, {a}, {b}
        v_bfe_u32 {a}, {L}, 1, 2
        v_and_b32 {c}, 1, {L}
        v_lshlrev_b32 {c}, 4, {c}
        v_cndmask_b32 {a}, 7, {a}, vcc
        v_lshlrev_b32 {self.vD}, {c}, {self.vD}
        """)
        for d in range(4):
            g(f"v_cmp_eq_u32 vcc, {d}, {a}\nv_cndmask_b32 {self.AD[d]}, 0, {self.vD}, vcc")
        v.put(a, z, E, O, self.hraw[0], self.hraw[1], self.vb1, self.vb2, self.vD); s.put(lo)

    def tagcheck(self, regs, t0, t1):
        g = self.g
        for op, t in (("min", t0), ("max", t1)):
            r = list(regs)
            g(f"v_{op}3_u32 {t}, {r[0]}, {r[1]}, {r[2]}") if len(r) >= 3 else g(f"v_{op}_u32 {t}, {r[0]}, {r[-1]}")
            r = r[3:]
            while r:
                if len(r) >= 2:
                    g(f"v_{op}3_u32 {t}, {t}, {r[0]}, {r[1]}"); r = r[2:]
                else:
                    g(f"v_{op}_u32 {t}, {t}, {r[0]}"); r = r[1:]
        g(f"v_xor_b32 {t0}, {self.tag}, {t0}")
        g(f"v_xor_b32 {t1}, {self.tag}, {t1}")
        g(f"v_or_b32 {t0}, {t0}, {t1}")
        g(f"v_cmp_ne_u32 vcc, 0, {t0}")

    def poll(self, body):
        g = self.g
        lp, ok = g.label("Lp"), g.label("Lok")
        g(f"s_mov_b32 {self.cnt}, {POLL_LIMIT}")
        g(f"{lp}:")
        body()
        g(f"""
        s_cbranch_vccz {ok}
        s_sub_u32 {self.cnt}, {self.cnt}, 1
        s_cbranch_scc1 L_exit
        s_branch {lp}
        {ok}:
        """)

    def u_gather(self):
        g, s, v = self.g, self.s, self.v
        a, t0, t1, r = v.get(), v.get(), v.get(), v.get(16)
        g(f"""
        v_lshrrev_b32 {a}, 3, v0
        v_and_b32 {t0}, 7, v0
        v_lshlrev_b32 {a}, 9, {a}
        v_lshl_add_u32 {a}, {t0}, 4, {a}
        s_lshl_b32 {self.t0}, {self.ch0}, 13
        s_add_u32 {self.t0}, {self.t0}, {WS_U}
        """)
        def body():
            for i in range(4):
                g(f"buffer_load_dwordx4 {r[4 * i:4 * i + 4]}, {a}, {self.WS}, {self.t0} offen offset:{128 * i} sc1")
            self.tagcheck([r[2 * i + 1] for i in range(8)], t0, t1)
        self.poll(body)
        g(f"v_lshlrev_b32 {a}, 4, v0")
        g(f"v_add_u32 {a}, {L_U + 480}, {a}")
        for e in range(2):
            q = r[8 * e:8 * e + 8]
            g(f"v_mov_b32 {q[1]}, {q[2]}\nv_mov_b32 {q[2]}, {q[4]}\nv_mov_b32 {q[3]}, {q[6]}")
            g(f"ds_write_b128 {a}, {q[0:4]} offset:{4608 * e}", pw=["HC"])
        v.put(a, t0, t1, r)

    def conv(self, fill):
        g, s, v = self.g, self.s, self.v
        vA, vB, t, u = [v.get() for _ in range(4)]
        acc = v.get(32)
        A = [v.get(32), v.get(32)]
        B = [v.get(32), v.get(32)]
        L = self.lane
        half = s.get()
        g(f"""
        s_and_b32 {half}, {self.w}, 1
        s_lshr_b32 {self.t0}, {self.w}, 1
        v_and_b32 {t}, 7, {L}
        v_mul_u32_u24 {vA}, 4160, {t}
        v_bfe_u32 {t}, {L}, 3, 1
        v_lshrrev_b32 {u}, 4, {L}
        v_sub_u32 {t}, {t}, {u}
        v_lshl_add_u32 {vA}, {t}, 4, {vA}
        s_mul_i32 {self.t1}, {self.t0}, 33280
        s_lshl_b32 {self.cnt}, {half}, 8
        s_add_u32 {self.t1}, {self.t1}, {self.cnt}
        s_add_u32 {self.t1}, {self.t1}, {L_HC + 48}
        v_add_u32 {vA}, {self.t1}, {vA}
        v_and_b32 {t}, 15, {L}
        v_lshlrev_b32 {vB}, 5, {t}
        v_lshl_add_u32 {vB}, {u}, 4, {vB}
        s_mul_i32 {self.t1}, {self.t0}, 4608
        s_sub_u32 {self.t1}, {self.t1}, {self.cnt}
        s_add_u32 {self.t1}, {self.t1}, {L_U + 256}
        v_add_u32 {vB}, {self.t1}, {vB}
        """)
        g("s_barrier", pr=["HC"])
        self.stamp()
        def reads(r):
            for i in range(8):
                g(f"ds_read_b128 {B[r & 1][4 * i:4 * i + 4]}, {vB} offset:{512 * i + 64 * (3 - r)}", pr=["HC"])
                g(f"ds_read_b128 {A[r & 1][4 * i:4 * i + 4]}, {vA} offset:{512 * i + 64 * r}", pr=["HC"])
        def mf(r):
            for gg in range(8):
                for d in range(8 - gg):
                    c = acc[4 * (gg + d):4 * (gg + d) + 4]
                    g(f"v_mfma_f32_16x16x32_bf16 {c}, {A[r & 1][4 * gg:4 * gg + 4]}, {B[r & 1][4 * d:4 * d + 4]}, "
                      f"{0 if r == 0 and gg == 0 else c}")
        reads(0)
        fl = fill
        for r in range(4):
            main = g.cap(mf, r)
            if r < 3:
                main = weave(main, g.cap(reads, r + 1), 0.5, start=2)
            n = len(fl) // (4 - r)
            main = weave(main, fl[:n], n / 36.0); fl = fl[n:]
            g.emit(main)
        self.stamp()
        ex, ya, gr = vA, u, A[0]
        tmp = A[1]
        g(f"""
        s_lshl_b32 {self.t1}, {self.w}, 12
        s_add_u32 {self.t1}, {self.t1}, {L_EX}
        v_add_u32 {ex}, {self.t1}, {self.l16}
        v_and_b32 {t}, 15, {L}
        v_lshlrev_b32 {ya}, 4, {u}
        v_lshl_add_u32 {ya}, {t}, 6, {ya}
        s_add_u32 {self.t0}, {self.t0}, {self.ch0}
        s_lshl1_add_u32 {self.t0}, {self.t0}, {half}
        s_lshl_b32 {self.t0}, {self.t0}, 12
        s_add_u32 {self.t0}, {self.t0}, {WS_Y}
        v_xor_b32 {t}, 4096, {ex}
        """)
        for i in range(8): g(f"v_mov_b32 {gr[2 * i + 1]}, {self.vtag}")
        l1, l2 = g.label("Lh"), g.label("Lh")
        g(f"s_cmp_eq_u32 {half}, 1\ns_cbranch_scc1 {l1}")
        for h in range(2):
            own, snd = 4 * h, 4 * (1 - h)
            for i in range(4):
                g(f"ds_read_b128 {B[1][4 * i:4 * i + 4]}, {vB} offset:{192 + 256 * h + 512 * (own + i)}", pr=["HC"])
            for i in range(4):
                g(f"ds_write_b128 {ex}, {acc[4 * (snd + i):4 * (snd + i) + 4]} offset:{1024 * i}", pw=["EX"])
            for i in range(4):
                c = acc[4 * (own + i):4 * (own + i) + 4]
                g(f"v_mfma_f32_16x16x32_bf16 {c}, {self.AD}, {B[1][4 * i:4 * i + 4]}, {c}")
            g("s_barrier", pr=["EX"], pw=["HC"])
            for i in range(4):
                g(f"ds_read_b128 {tmp[4 * i:4 * i + 4]}, {t} offset:{1024 * i}", pr=["EX"])
            for i in range(4):
                c = acc[4 * (own + i):4 * (own + i) + 4]
                for k in range(2):
                    g(f"v_pk_add_f32 {c[2 * k:2 * k + 2]}, {c[2 * k:2 * k + 2]}, {tmp[4 * i + 2 * k:4 * i + 2 * k + 2]}")
                for k in range(2):
                    g(f"v_cvt_pk_bf16_f32 {gr[4 * i + 2 * k]}, {c[2 * k]}, {c[2 * k + 1]}")
                g(f"buffer_store_dwordx4 {gr[4 * i:4 * i + 4]}, {ya}, {self.WS}, {self.t0} offen offset:{1024 * i} sc1")
            if h == 0:
                g(f"s_branch {l2}\n{l1}:")
        g(f"{l2}:")
        g("s_barrier", pw=["EX"])
        v.put(vA, vB, t, u, acc, B[0], B[1], A[0], A[1], self.AD); s.put(half)
        assert all(i in v.free_ for i in range(160, 256))
        v.free_.difference_update(range(160, 256))

    def y_gather(self):
        g, s, v = self.g, self.s, self.v
        a, t0, t1, r = v.get(), v.get(), v.get(), v.get(16)
        L = self.lane
        g(f"""
        v_lshrrev_b32 {a}, 3, {L}
        v_and_b32 {t0}, 7, {L}
        v_lshlrev_b32 {a}, 16, {a}
        v_lshl_add_u32 {a}, {t0}, 3, {a}
        s_lshl2_add_u32 {self.t0}, {self.C}, {self.w}
        s_lshl_b32 {self.t0}, {self.t0}, 6
        s_lshl_b32 {self.t1}, {self.m}, 19
        s_add_u32 {self.t0}, {self.t0}, {self.t1}
        s_add_u32 {self.t0}, {self.t0}, {WS_Y}
        """)
        def body():
            for i in range(8):
                g(f"s_add_u32 {self.t1}, {self.t0}, {8192 * i}")
                g(f"buffer_load_dwordx2 {r[2 * i:2 * i + 2]}, {a}, {self.WS}, {self.t1} offen sc1")
            self.tagcheck([r[2 * i + 1] for i in range(8)], t0, t1)
        self.poll(body)
        for i in range(8): g(f"v_mov_b32 {self.yP[i]}, {r[2 * i]}")
        v.put(a, t0, t1, r)

    def mlp_init(self):
        g, s, v = self.g, self.s, self.v
        for gi in range(2):
            for k in range(4):
                g(f"v_lshlrev_b32 {self.xa[4 * k + gi]}, 16, {self.qraw[gi][k]}")
                g(f"v_and_b32 {self.xa[4 * k + 2 + gi]}, {self.msk}, {self.qraw[gi][k]}")
        v.put(*self.qraw)
        self.sST, self.sZ, self.sH, self.sFL = [s.get() for _ in range(4)]
        a, b = v.get(), v.get()
        L = self.lane
        g(f"""
        s_lshr_b32 {self.t0}, {self.w}, 1
        s_lshl_b32 {self.t0}, {self.t0}, 7
        v_xor_b32 {self.vzs}, {self.t0}, {self.l16}
        v_bfe_u32 {a}, {L}, 3, 2
        v_and_b32 {b}, 7, {L}
        v_lshlrev_b32 {b}, 4, {b}
        v_lshl_add_u32 {b}, {a}, 10, {b}
        v_lshrrev_b32 {a}, 5, {L}
        v_lshl_add_u32 {self.vrw}, {a}, 8, {b}
        v_lshlrev_b32 {self.vb1a}, 4, {a}
        v_bfe_u32 {self.vzr}, {L}, 4, 1
        v_xor_b32 {a}, {a}, {self.vzr}
        v_lshl_add_u32 {self.vzr}, {a}, 7, {b}
        v_add_u32 {self.vzr}, {L_Z}, {self.vzr}
        s_lshl_b32 {self.t0}, {self.w}, 13
        s_add_u32 {self.t0}, {self.t0}, {L_Z}
        v_add_u32 {self.vrw}, {self.t0}, {self.vrw}
        s_lshl_b32 {self.t0}, {self.w}, 10
        s_add_u32 {self.t0}, {self.t0}, {L_Z}
        v_add_u32 {self.vrr}, {self.t0}, {self.l16}
        s_lshl_b32 {self.t0}, {self.w}, 8
        s_add_u32 {self.t0}, {self.t0}, {L_MISC}
        v_add_u32 {self.vb1a}, {self.t0}, {self.vb1a}
        v_lshrrev_b32 {a}, 3, {L}
        v_lshlrev_b32 {a}, 5, {a}
        v_add_u32 {self.vb2a}, {L_MISC + 1024}, {a}
        v_min_u32 {a}, 6, {L}
        v_lshlrev_b32 {self.vfl}, 2, {a}
        v_cmp_eq_u32 vcc, 0, {L}
        v_mov_b32 {a}, {OOB}
        s_lshl_b32 {self.t0}, {self.m}, 2
        v_mov_b32 {b}, {self.t0}
        v_cndmask_b32 {self.vf0}, {a}, {b}, vcc
        s_mul_i32 {self.sST}, {self.C}, {28 * 1024}
        s_lshl_b32 {self.t0}, {self.w}, 10
        s_add_u32 {self.sST}, {self.sST}, {self.t0}
        s_mul_i32 {self.sZ}, {self.C}, {56 * 1024}
        s_add_u32 {self.sZ}, {self.sZ}, {self.t0}
        s_lshl2_add_u32 {self.sH}, {self.sZ}, {WS_H}
        s_add_u32 {self.sST}, {self.sST}, {WS_ST}
        s_add_u32 {self.sZ}, {self.sZ}, {WS_Z}
        s_lshl3_add_u32 {self.t0}, {self.C}, {self.w}
        s_lshl_b32 {self.sFL}, {self.t0}, 7
        s_add_u32 {self.sFL}, {self.sFL}, {WS_FL}
        """)
        v.put(a, b)

    def flag_off(self, layer, kind, gi):
        return (layer * 2 + kind) * 32768 + gi * 512

    def flag_set(self, layer, kind, gi, res):
        g = self.g
        g(f"s_add_u32 {self.t1}, {self.sFL}, {self.flag_off(layer, kind, gi)}")
        g(f"buffer_store_dword {self.vtag}, {self.vf0}, {self.WS}, {self.t1} offen {self.st}", pr=[res])

    def flag_wait(self, layer, kind, gi):
        g, v = self.g, self.v
        r = v.get()
        g(f"s_add_u32 {self.t0}, {self.sFL}, {self.flag_off(layer, kind, gi)}")
        def body():
            g(f"buffer_load_dword {r}, {self.vfl}, {self.WS}, {self.t0} offen sc1")
            g(f"v_cmp_ne_u32 vcc, {self.tag}, {r}")
        self.poll(body)
        v.put(r)

    def e_stage(self, layer):
        g, s, v = self.g, self.s, self.v
        xa = self.xa
        y, S, ay = v.get(16), v.get(16), v.get(2)
        P = lambda r, i: r[2 * i:2 * i + 2]
        for i in range(8):
            g(f"v_lshlrev_b32 {y[2 * i]}, 16, {self.yP[i]}\nv_and_b32 {y[2 * i + 1]}, {self.msk}, {self.yP[i]}")
        for i in range(8):
            a, yy = P(xa, i), P(y, i)
            if i == 0:
                g(f"""
                v_pk_mul_f32 {P(S, 2)}, {a}, {yy}
                v_pk_add_f32 {P(S, 0)}, {a}, {P(xa, 1)}
                v_pk_mul_f32 {P(S, 1)}, {a}, {a}
                v_pk_mul_f32 {P(S, 3)}, {a}, {P(S, 2)}
                v_pk_mul_f32 {P(S, 4)}, {yy}, {P(S, 2)}
                v_pk_mul_f32 {P(S, 5)}, {P(S, 2)}, {P(S, 2)}
                v_pk_add_f32 {P(S, 6)}, {yy}, {P(y, 1)}
                v_pk_mul_f32 {P(S, 7)}, {yy}, {yy}
                """)
                continue
            g(f"v_pk_mul_f32 {ay}, {a}, {yy}")
            if i > 1:
                g(f"v_pk_add_f32 {P(S, 0)}, {P(S, 0)}, {a}\nv_pk_add_f32 {P(S, 6)}, {P(S, 6)}, {yy}")
            g(f"""
            v_pk_fma_f32 {P(S, 1)}, {a}, {a}, {P(S, 1)}
            v_pk_fma_f32 {P(S, 7)}, {yy}, {yy}, {P(S, 7)}
            v_pk_add_f32 {P(S, 2)}, {P(S, 2)}, {ay}
            v_pk_fma_f32 {P(S, 3)}, {a}, {ay}, {P(S, 3)}
            v_pk_fma_f32 {P(S, 4)}, {yy}, {ay}, {P(S, 4)}
            v_pk_fma_f32 {P(S, 5)}, {ay}, {ay}, {P(S, 5)}
            """)
        for k in range(8): g(f"v_permlane32_swap_b32 {S[k]}, {S[k + 8]}")
        for k in range(4): g(f"v_pk_add_f32 {P(S, k)}, {P(S, k)}, {P(S, k + 4)}")
        for k in range(4): g(f"v_permlane16_swap_b32 {S[k]}, {S[k + 4]}")
        for k in range(2): g(f"v_pk_add_f32 {P(S, k)}, {P(S, k)}, {P(S, k + 2)}")
        gr = S[8:12]
        g(f"v_mov_b32 {gr[1]}, {self.vtag}\nv_mov_b32 {gr[3]}, {self.vtag}")
        for k in range(2):
            for h in range(2):
                g(f"v_add_f32_dpp {gr[2 * k]}, {S[2 * k + h]}, {S[2 * k + h]} row_ror:8 row_mask:0xf "
                  f"bank_mask:{'0xc' if h else '0x3'}")
        lo = layer * 32 * 28 * 1024
        g(f"s_add_u32 {self.t0}, {self.sST}, {lo}")
        g(f"s_add_u32 {self.t1}, {self.t0}, {self.m4k[0]}")
        g(f"buffer_store_dwordx4 {gr}, {self.l16}, {self.WS}, {self.t1} offen {self.st}")
        r, t0, t1 = v.get(24), ay[0], ay[1]
        def body():
            for mm in range(1, 7):
                g(f"s_add_u32 {self.t1}, {self.t0}, {self.m4k[mm]}")
                g(f"buffer_load_dwordx4 {r[4 * mm - 4:4 * mm]}, {self.l16}, {self.WS}, {self.t1} offen sc1")
            self.tagcheck([r[2 * i + 1] for i in range(12)], t0, t1)
        self.poll(body)
        self.stamp()
        if layer == 0:
            lab = g.label("Lep")
            g(f"s_or_b32 {self.t1}, s2, {self.w}\ns_cmp_lg_u32 {self.t1}, 0\ns_cbranch_scc1 {lab}")
            g(f"buffer_store_dword {self.vtag}, off, {self.WS}, 0 sc0 sc1")
            g(f"{lab}:")
        for k in range(2):
            g(f"v_add_f32 {S[k]}, {gr[2 * k]}, {r[2 * k]}")
            g(f"v_add_f32 {r[4 + 2 * k]}, {r[4 + 2 * k]}, {r[8 + 2 * k]}")
            g(f"v_add_f32 {r[12 + 2 * k]}, {r[12 + 2 * k]}, {r[16 + 2 * k]}")
            g(f"v_add_f32 {S[k]}, {S[k]}, {r[20 + 2 * k]}")
            g(f"v_add_f32 {r[4 + 2 * k]}, {r[4 + 2 * k]}, {r[12 + 2 * k]}")
            g(f"v_add_f32 {S[k]}, {S[k]}, {r[4 + 2 * k]}")
        for k in range(2): g(f"v_mov_b32 {S[k + 2]}, {S[k]}")
        for k in range(2): g(f"v_permlane16_swap_b32 {S[k]}, {S[k + 2]}")
        for k in range(4): g(f"v_mov_b32 {S[k + 4]}, {S[k]}")
        for k in range(4): g(f"v_permlane32_swap_b32 {S[k]}, {S[k + 4]}")
        co = r[0:8]
        mu, t, u2, rho, c, R, M = r[8], r[9], r[10], co[0], co[2], co[4], co[6]
        rn, eps = f2u(1.0 / 448), f2u(1e-5)
        g(f"""
        v_mul_f32 {mu}, {rn}, {S[0]}
        v_mul_f32 {t}, {mu}, {mu}
        v_fma_f32 {t}, {S[1]}, {self.crn()}, -{t}
        v_add_f32 {t}, {eps}, {t}
        v_rsq_f32 {rho}, {t}
        v_mul_f32 {c}, {mu}, {rho}
        v_fma_f32 {S[0]}, {rho}, {S[2]}, {S[0]}
        v_fma_f32 {S[0]}, -{c}, {S[6]}, {S[0]}
        v_mul_f32 {t}, {rho}, {S[5]}
        v_fma_f32 {t}, 2.0, {S[3]}, {t}
        v_fma_f32 {S[1]}, {rho}, {t}, {S[1]}
        v_fma_f32 {u2}, {rho}, {S[4]}, {S[2]}
        v_mul_f32 {t}, {c}, {S[7]}
        v_fma_f32 {t}, -2.0, {u2}, {t}
        v_fma_f32 {S[1]}, {c}, {t}, {S[1]}
        v_mul_f32 {mu}, {rn}, {S[0]}
        v_mul_f32 {t}, {mu}, {mu}
        v_fma_f32 {t}, {S[1]}, {self.crn()}, -{t}
        v_add_f32 {u2}, {eps}, {t}
        v_rsq_f32 {R}, {u2}
        v_mul_f32 {c}, -1.0, {c}
        v_mul_f32 {t}, {t}, {R}
        v_fmaak_f32 {t}, {t}, {R}, {eps}
        v_rsq_f32 {t}, {t}
        v_mul_f32 {R}, {R}, {t}
        v_mul_f32 {M}, {mu}, {R}
        v_mul_f32 {M}, -1.0, {M}
        """)
        for k in range(4): g(f"v_mov_b32 {co[2 * k + 1]}, {co[2 * k]}")
        for k in range(4): g(f"v_mov_b32_dpp {co[2 * k + 1]}, {co[2 * k]} row_ror:8 row_mask:0xf bank_mask:0x3")
        for k in range(4): g(f"v_mov_b32_dpp {co[2 * k]}, {co[2 * k]} row_ror:8 row_mask:0xf bank_mask:0xc")
        b2 = r[8:16]
        g(f"ds_read_b128 {b2[0:4]}, {self.vb2a}\nds_read_b128 {b2[4:8]}, {self.vb2a} offset:16")
        for i in range(8): g(f"v_pk_fma_f32 {P(S, i)}, {P(xa, i)}, {P(co, 0)}, {P(co, 1)}")
        for i in range(8): g(f"v_pk_fma_f32 {P(xa, i)}, {P(S, i)}, {P(y, i)}, {P(xa, i)}")
        for i in range(8): g(f"v_pk_fma_f32 {P(S, i)}, {P(xa, i)}, {P(co, 2)}, {P(co, 3)}")
        zp = r[16:24]
        lo = layer * 32 * 56 * 1024
        za = t0
        g(f"s_lshl_b32 {self.t1}, {self.w}, 10")
        g(f"s_add_u32 {self.t1}, {self.t1}, {self.m4k[0]}")
        g(f"s_add_u32 {self.t1}, {self.t1}, {L_Z}")
        g(f"v_add_u32 {za}, {self.t1}, {self.vzs}")
        for gi in range(2):
            for k in range(4):
                g(f"v_cvt_pk_bf16_f32 {zp[4 * gi + k]}, {S[4 * k + gi]}, {S[4 * k + 2 + gi]}")
            g(f"s_add_u32 {self.t0}, {self.sZ}, {lo + gi * 28672}")
            g(f"s_add_u32 {self.t1}, {self.t0}, {self.m4k[0]}")
            g(f"buffer_store_dwordx4 {zp[4 * gi:4 * gi + 4]}, {self.vzs}, {self.WS}, {self.t1} offen {self.st}", pw=["gz"])
        for i in range(8):
            sel = "op_sel:[0,1] op_sel_hi:[1,1]" if i & 1 else "op_sel:[0,0] op_sel_hi:[1,0]"
            g(f"v_pk_add_f32 {P(xa, i)}, {P(xa, i)}, {P(b2, i >> 1)} {sel}")
        self.flag_set(layer, 0, 0, "gz")
        g("s_barrier", pw=["Z"])
        for gi in range(2):
            g(f"ds_write_b128 {za}, {zp[4 * gi:4 * gi + 4]} offset:{32768 * gi}", pw=["Z"])
        self.flag_wait(layer, 0, 0)
        for gi in range(2):
            for mm in range(1, 7):
                g(f"s_lshl_b32 {self.t1}, {self.w}, 10")
                g(f"s_add_u32 {self.t1}, {self.t1}, {self.m4k[mm]}")
                g(f"s_add_u32 m0, {self.t1}, {L_Z + 32768 * gi}")
                g(f"s_add_u32 {self.t1}, {self.sZ}, {self.m4k[mm]}")
                g(f"s_add_u32 {self.t1}, {self.t1}, {lo + gi * 28672}")
                g(f"buffer_load_dwordx4 {self.l16}, {self.WS}, {self.t1} offen sc1 lds", pw=["Z"])
        g("s_barrier", pr=["Z"])
        v.put(y, S, ay, r)

    def crn(self):
        if not hasattr(self, "srn"):
            self.srn = self.s.get(); self.g(f"s_mov_b32 {self.srn}, {f2u(1.0 / 448)}")
        return self.srn

    def g1(self, gi, acc):
        g, v = self.g, self.v
        B = v.get(12)
        for ft in range(2):
            for q in range(4):
                g(f"ds_read_b128 {acc[16 * ft + 4 * q:16 * ft + 4 * q + 4]}, {self.vb1a} offset:{128 * ft + 32 * q}")
        rd = lambda ks: g(f"ds_read_b128 {B[4 * (ks % 3):4 * (ks % 3) + 4]}, {self.vzr} "
                          f"offset:{32768 * gi + 4096 * (ks >> 2) + 256 * (ks & 3)}", pr=["Z"])
        rd(0); rd(1)
        for ks in range(28):
            if ks + 2 < 28: rd(ks + 2)
            for ft in range(2):
                c = acc[16 * ft:16 * ft + 16]
                g(f"v_mfma_f32_32x32x16_bf16 {c}, {self.w1(ks, ft)}, {B[4 * (ks % 3):4 * (ks % 3) + 4]}, {c}")
        v.put(B)

    def gelu(self, layer, gi, acc):
        g, v = self.g, self.v
        T = v.get(8)
        k1, k2 = f2u(K1), f2u(K2)
        g(f"s_lshl2_add_u32 {self.t0}, {self.m4k[0]}, {self.sH}")
        g(f"s_add_u32 {self.t0}, {self.t0}, {(layer * 64 + gi) * 114688}")
        for f in range(4):
            x = [acc[8 * f + i] for i in range(8)]
            for i in range(8): g(f"v_mul_f32 {T[i]}, {x[i]}, {x[i]}")
            for i in range(8): g(f"v_fmaak_f32 {T[i]}, {self.ck2()}, {T[i]}, {k1}")
            for i in range(8): g(f"v_mul_f32 {T[i]}, {T[i]}, {x[i]}")
            for i in range(8): g(f"v_exp_f32 {T[i]}, {T[i]}")
            for i in range(8): g(f"v_add_f32 {T[i]}, 1.0, {T[i]}")
            for i in range(8): g(f"v_rcp_f32 {T[i]}, {T[i]}")
            for i in range(8): g(f"v_mul_f32 {T[i]}, {T[i]}, {x[i]}")
            for i in range(4): g(f"v_cvt_pk_bf16_f32 {acc[4 * f + i]}, {T[2 * i]}, {T[2 * i + 1]}")
            g(f"buffer_store_dwordx4 {acc[4 * f:4 * f + 4]}, {self.l16}, {self.WS}, {self.t0} offen offset:{1024 * f} {self.st}",
              pw=[f"gh{gi}"])
        self.flag_set(layer, 1, gi, f"gh{gi}")
        v.put(T)

    def ck2(self):
        return self.vk2

    def g2(self, layer, gi, hown, acc):
        g, v = self.g, self.v
        NB = 6
        hb, wa = v.get(4 * NB), v.get(16)
        self.flag_wait(layer, 1, gi)
        def ld(kb):
            mm, q = kb >> 2, kb & 3
            if q == 0:
                g(f"s_lshl2_add_u32 {self.t0}, {self.m4k[mm]}, {self.sH}")
                g(f"s_add_u32 {self.t0}, {self.t0}, {(layer * 64 + gi) * 114688}")
            i = (kb - 4) % NB
            g(f"buffer_load_dwordx4 {hb[4 * i:4 * i + 4]}, {self.l16}, {self.WS}, {self.t0} offen offset:{1024 * q} sc1")
        lq = list(self.w2_lds)
        def lrd(kb):
            n = self.w2_lds.index(kb); sl = self.slot[("w2", kb)]
            for t in range(2):
                for rd in range(2):
                    o = 8 * (n & 1) + 4 * t + 2 * rd
                    g(f"ds_read_b64_tr_b16 {wa[o:o + 2]}, {self.vt2[t]} offset:{sl * 2048 + rd * 1024}", pr=[f"B{sl}"])
        for kb in range(4, 4 + NB): ld(kb)
        lrd(lq.pop(0))
        for kb in range(28):
            if kb in self.w2_lds:
                n = self.w2_lds.index(kb); W = wa[8 * (n & 1):8 * (n & 1) + 8]
                if lq: lrd(lq.pop(0))
            else:
                W = self.w2_reg[kb]
            i = (kb - 4) % NB
            Bf = hown[4 * kb:4 * kb + 4] if kb < 4 else hb[4 * i:4 * i + 4]
            for ct in range(2):
                g(f"v_mfma_f32_32x32x16_bf16 {acc[ct]}, {W[4 * ct:4 * ct + 4]}, {Bf}, {0 if kb == 0 else acc[ct]}")
            if kb >= 4 and kb + NB < 28: ld(kb + NB)
        v.put(hb, wa)

    def reduce(self, gi, acc):
        g, v = self.g, self.v
        off = 28672 * gi
        r = v.get(32)
        for ct in range(2):
            for k in range(4):
                g(f"ds_write_b128 {self.vrw}, {acc[ct][4 * k:4 * k + 4]} "
                  f"offset:{off + 512 * ct + 128 * (k >> 1) + 4096 * (k & 1)}", pw=["Z"])
        g("s_barrier", pr=["Z"])
        for sw in range(4):
            for qd in range(2):
                g(f"ds_read_b128 {r[8 * sw + 4 * qd:8 * sw + 4 * qd + 4]}, {self.vrr} offset:{off + 8192 * sw + 4096 * qd}",
                  pr=["Z"])
        for k in range(4):
            g(f"v_pk_add_f32 {r[2 * k:2 * k + 2]}, {r[2 * k:2 * k + 2]}, {r[8 + 2 * k:10 + 2 * k]}")
            g(f"v_pk_add_f32 {r[16 + 2 * k:18 + 2 * k]}, {r[16 + 2 * k:18 + 2 * k]}, {r[24 + 2 * k:26 + 2 * k]}")
        for k in range(4):
            g(f"v_pk_add_f32 {r[2 * k:2 * k + 2]}, {r[2 * k:2 * k + 2]}, {r[16 + 2 * k:18 + 2 * k]}")
        for i in range(8):
            g(f"v_add_f32 {self.xa[2 * i + gi]}, {self.xa[2 * i + gi]}, {r[i]}")
        v.put(r)

    def out_store(self, gi):
        g, v = self.g, self.v
        o = v.get(4)
        for k in range(4):
            g(f"v_cvt_pk_bf16_f32 {o[k]}, {self.xa[4 * k + gi]}, {self.xa[4 * k + 2 + gi]}")
        g(f"buffer_store_dwordx4 {o}, {self.vrow}, {self.OUT}, 0 offen offset:{896 * gi}")
        g("s_nop 1")
        v.put(o)

    def layer(self, layer):
        g, v = self.g, self.v
        self.e_stage(layer)
        self.stamp()
        accA, accB, sp = v.get(32), v.get(32), v.get(16)
        self.g1(0, accA)
        self.gelu(layer, 0, accA)
        self.g1(1, accB)
        self.gelu(layer, 1, accB)
        self.stamp()
        g("s_barrier", pw=["Z"])
        a2 = [accA[16:32], sp]
        self.g2(layer, 0, accA[0:16], a2)
        self.reduce(0, a2)
        if layer == 1: self.out_store(0)
        b2 = [accB[16:32], accA[0:16]]
        self.g2(layer, 1, accB[0:16], b2)
        g("s_barrier", pw=["Z"])
        self.reduce(1, b2)
        if layer == 1: self.out_store(1)
        v.put(accA, accB, sp)

    def build(self):
        g = self.g
        self.prologue()
        self.t_loads()
        g(f"s_cmp_ge_u32 {self.j}, 28\ns_cbranch_scc1 L_tonly")
        sv, ss = set(self.v.free_), set(self.s.free_)
        self.early_loads()
        self.wstream_init()
        self.w_issue(7)
        self.t_compute()
        self.stamp()
        self.h_copies()
        self.u_gather()
        def fill():
            for _ in range(14):
                self.w_read(1); self.w_issue(1)
        self.conv(g.cap(fill))
        self.stamp()
        while self.n_read < 28:
            self.w_read(1)
            if self.n_issue < 28: self.w_issue(1)
        self.w_issue(12)
        while self.n_read < 44:
            self.w_read(1); self.w_issue(1)
        self.mlp_init()
        g(f"v_mov_b32 {self.vk2}, {f2u(K2)}"); self.crn()
        self.y_gather()
        self.v.put(self.lane, self.vd1, self.vd2, self.vt1)
        self.stamp()
        g("s_barrier", pw=[f"A{i}" for i in range(7)])
        self.layer(0)
        self.layer(1)
        self.stamp()
        if self.prof:
            lab = g.label("Ld")
            g(f"s_or_b32 {self.t1}, s2, {self.w}\ns_cmp_lg_u32 {self.t1}, 0\ns_cbranch_scc1 {lab}")
            for n in range(self.nstamp):
                g(f"s_sub_u32 {self.t1}, {self.stamps[n][0]}, {self.stamps[0][0]}")
                g(f"v_mov_b32 v1, {self.t1}")
                g(f"buffer_store_dword v1, off, {self.DBG}, 0 offset:{4 * n}")
            g(f"{lab}:")
        g("s_endpgm")
        g("L_tonly:")
        self.v.free_, self.s.free_ = sv, ss
        self.ua = self.ua
        self.t_compute()
        g("L_exit:")
        body = "\n".join("    " + l if not l.endswith(":") else l for l in g.lines())
        return f"""; @launch grid=(256,1,1) block=(256,1,1) lds={LDS_BYTES}
.amdgcn_target "amdgcn-amd-amdhsa--gfx950"
.text
.globl {NAME}_kernel
.p2align 8
.type {NAME}_kernel,@function
{NAME}_kernel:
{body}
    s_endpgm
.section .rodata,"a"
.p2align 6
.amdhsa_kernel {NAME}_kernel
  .amdhsa_next_free_vgpr 512
  .amdhsa_next_free_sgpr 102
  .amdhsa_accum_offset 256
  .amdhsa_group_segment_fixed_size 0
  .amdhsa_kernarg_size 112
  .amdhsa_user_sgpr_count 2
  .amdhsa_user_sgpr_kernarg_segment_ptr 1
  .amdhsa_system_sgpr_workgroup_id_x 1
.end_amdhsa_kernel
"""


if __name__ == "__main__":
    import argparse
    ap = argparse.ArgumentParser()
    ap.add_argument("-o", default=f"cdna_kernels/{NAME}.s")
    ap.add_argument("--st", default="sc1")
    ap.add_argument("--prof", action="store_true")
    a = ap.parse_args()
    open(a.o, "w").write(K(st=a.st, prof=a.prof).build())
```

```python
import re

TRANS = ("v_exp_f32", "v_log_f32", "v_rcp_f32", "v_rsq_f32", "v_sqrt_f32", "v_sin_f32", "v_cos_f32", "v_rcp_iflag_f32")
NODST_S = ("s_cmp", "s_cbranch", "s_branch", "s_waitcnt", "s_barrier", "s_nop", "s_setprio", "s_endpgm",
           "s_sleep", "s_bitcmp", "s_setreg", "s_sendmsg")
REG_RE = re.compile(r"^(-|\|)?([vas])(?:(\d+)|\[(\d+):(\d+)\])\|?$")


def regs_of(tok):
    tok = tok.strip()
    if tok in ("vcc",):
        return [("s", "vcc_lo"), ("s", "vcc_hi")]
    if tok in ("vcc_lo", "vcc_hi", "m0"):
        return [("s", tok)]
    if tok == "exec":
        return [("s", "exec_lo"), ("s", "exec_hi")]
    if tok in ("exec_lo", "exec_hi"):
        return [("s", tok)]
    m = REG_RE.match(tok)
    if not m:
        return []
    c = m.group(2)
    if m.group(3) is not None:
        return [(c, int(m.group(3)))]
    return [(c, i) for i in range(int(m.group(4)), int(m.group(5)) + 1)]


def split_ops(s):
    out, depth, cur = [], 0, ""
    for ch in s:
        if ch in "[(":
            depth += 1
        if ch in "])":
            depth -= 1
        if ch == "," and depth == 0:
            out.append(cur.strip()); cur = ""
        else:
            cur += ch
    if cur.strip():
        out.append(cur.strip())
    return out


class Ins:
    __slots__ = ("text", "op", "kind", "rd", "wr", "pr", "pw", "ops", "mods", "passes", "srcC", "srcAB",
                 "target", "dpp", "wide_store", "store_data", "cmask", "nwait", "tag")

    def __init__(self, text, pr=(), pw=(), tag=None):
        self.text = text.strip()
        self.pr, self.pw = set(pr), set(pw)
        self.tag = tag
        self.rd, self.wr = set(), set()
        self.passes = 0; self.srcC = set(); self.srcAB = set(); self.target = None
        self.dpp = False; self.wide_store = False; self.store_data = set(); self.nwait = 1
        t = self.text
        if t.endswith(":"):
            self.op = "label"; self.kind = "label"; self.target = t[:-1]; self.nwait = 0; self.ops = []; self.mods = ""
            return
        if t.startswith(".") or t.startswith(";"):
            self.op = "dir"; self.kind = "dir"; self.nwait = 0; self.ops = []; self.mods = ""
            return
        sp = t.split(None, 1)
        op = sp[0]
        rest = sp[1] if len(sp) > 1 else ""
        self.op = op
        ops = split_ops(rest)
        mods = ""
        if ops and not op.startswith("s_waitcnt"):
            last = ops[-1].split(None, 1)
            if len(last) > 1:
                ops[-1] = last[0]; mods = last[1]
        self.ops, self.mods = ops, mods
        R = lambda i: regs_of(ops[i]) if i < len(ops) else []
        allr = lambda a: [r for i in range(a, len(ops)) for r in R(i)]
        base = re.sub(r"_(e32|e64|dpp|sdwa)$", "", op)
        if op.startswith("v_mfma"):
            self.kind = "mfma"
            self.passes = 8 if "32x32" in op else 4
            self.wr.update(R(0)); self.srcAB = set(R(1) + R(2)); self.srcC = set(R(3))
            self.rd.update(self.srcAB | self.srcC)
        elif op.startswith("v_"):
            self.kind = "trans" if base in TRANS else "valu"
            if "_co_" in op:
                self.wr.update(R(0) + R(1)); self.rd.update(allr(2))
            elif "permlane" in op and "swap" in op:
                self.wr.update(R(0) + R(1)); self.rd.update(R(0) + R(1))
            elif op == "v_nop":
                pass
            else:
                self.wr.update(R(0)); self.rd.update(allr(1))
            if base.startswith(("v_fmac", "v_mac", "v_pk_fmac", "v_dot2c", "v_writelane")):
                self.rd.update(R(0))
            if re.search(r"quad_perm|row_|wave_|_dpp", t):
                self.dpp = True; self.rd.update(R(0))
            if "UNUSED_PRESERVE" in mods:
                self.rd.update(R(0))
            if base == "v_cndmask_b32" and len(ops) == 3:
                self.rd.update(regs_of("vcc"))
        elif op.startswith(("s_load", "s_buffer_load", "s_memtime", "s_memrealtime")):
            self.kind = "smem"
            self.wr.update(R(0)); self.rd.update(allr(1))
        elif op.startswith("s_"):
            self.kind = "salu"
            if op.startswith("s_waitcnt"):
                self.kind = "wait"
            elif op == "s_barrier":
                self.kind = "barrier"
            elif op.startswith(("s_cbranch", "s_branch")):
                self.kind = "branch"; self.target = ops[0]
                if "vcc" in op: self.rd.update(regs_of("vcc"))
                if "exec" in op: self.rd.update(regs_of("exec"))
            elif op == "s_nop":
                self.nwait = int(ops[0], 0) + 1
            elif op == "s_endpgm":
                self.kind = "end"
            if op.startswith(NODST_S):
                self.rd.update(allr(0)) if self.kind == "salu" else None
            else:
                self.wr.update(R(0)); self.rd.update(allr(1))
                if "saveexec" in op:
                    self.wr.update(regs_of("exec")); self.rd.update(regs_of("exec"))
                if op.startswith(("s_addk", "s_mulk", "s_cmov", "s_bitset")):
                    self.rd.update(R(0))
        elif op.startswith(("buffer_load", "global_load")):
            lds = bool(re.search(r"\blds\b", mods)) or "_lds_" in op
            if lds:
                self.kind = "dma"; self.rd.update(allr(0)); self.rd.add(("s", "m0"))
            else:
                self.kind = "vload"; self.wr.update(R(0)); self.rd.update(allr(1))
                if "d16" in op: self.rd.update(R(0))
        elif op.startswith(("buffer_store", "global_store")):
            self.kind = "vstore"; self.rd.update(allr(0))
            di = 0 if op.startswith("buffer") else 1
            self.store_data = set(R(di)); self.wide_store = op.endswith(("x3", "x4"))
        elif op.startswith(("buffer_atomic", "global_atomic")):
            self.kind = "vstore"; self.rd.update(allr(0))
            assert "sc0" not in mods
        elif op.startswith(("buffer_inv", "buffer_wbl2")):
            self.kind = "vstore"
        elif op.startswith(("ds_read", "ds_bpermute", "ds_permute", "ds_swizzle")):
            self.kind = "dsread"; self.wr.update(R(0)); self.rd.update(allr(1))
        elif op.startswith("ds_"):
            self.kind = "dswrite"; self.rd.update(allr(0))
        else:
            raise ValueError("unknown instruction: " + t)

    def is_valu(self):
        return self.kind in ("valu", "trans")

    def is_vmem(self):
        return self.kind in ("vload", "vstore", "dma")

    def is_mem(self):
        return self.kind in ("vload", "vstore", "dma", "dsread", "dswrite")


def sgprs(s):
    return {r for r in s if r[0] == "s"}


def vgprs(s):
    return {r for r in s if r[0] != "s"}


def hazard_need(p, c):
    n = 0
    if p.kind == "mfma":
        big = p.passes == 8
        D = p.wr
        if c.kind == "mfma":
            if c.srcAB & D: n = max(n, 12 if big else 8)
            if c.srcC & D and not (c.srcC == D and c.passes == p.passes): n = max(n, 10 if big else 6)
            if c.wr & D and not (c.srcC == D and c.passes == p.passes): n = max(n, 10 if big else 6)
        elif c.is_valu() or c.is_mem():
            if (c.rd | c.wr) & D: n = max(n, 12 if big else 8)
            if c.wr & p.srcC: n = max(n, 7 if big else 3)
        return n
    if p.is_valu():
        pv, ps = vgprs(p.wr), sgprs(p.wr)
        if c.kind == "mfma" and c.rd & pv: n = max(n, 2)
        if c.is_valu():
            if c.dpp and c.rd & pv: n = max(n, 2)
            if "permlane" in c.op and c.rd & pv: n = max(n, 2)
            if c.op.startswith(("v_readlane", "v_readfirstlane")) and c.rd & pv: n = max(n, 1)
            if c.rd & ps: n = max(n, 4 if c.op.startswith(("v_readlane", "v_writelane")) else 2)
            if p.kind == "trans" and c.rd & pv: n = max(n, 1)
            if ("op_sel" in p.mods or "sdwa" in p.op or "dst_sel" in p.mods) and not p.op.startswith("v_pk_") \
                    and (c.rd | c.wr) & pv: n = max(n, 1)
        if p.kind == "trans" and c.is_mem() and c.rd & pv: n = max(n, 1)
        if c.is_vmem() and c.rd & ps: n = max(n, 5)
        ex = {("s", "exec_lo"), ("s", "exec_hi")}
        if ps & ex and (c.is_valu() or c.kind == "mfma"): n = max(n, 5)
        return n
    if p.kind == "salu":
        if ("s", "m0") in p.wr and c.kind == "dma": n = max(n, 1)
        return n
    if p.kind == "vstore" and p.wide_store:
        if c.wr & p.store_data: n = max(n, 2 if c.is_valu() or c.kind == "mfma" else 1)
        return n
    return n


class State:
    def __init__(self):
        self.vm, self.lg = {}, {}
        self.smem = False
        self.hist = []

    def copy(self):
        s = State(); s.vm = dict(self.vm); s.lg = dict(self.lg); s.smem = self.smem; s.hist = list(self.hist)
        return s

    def merge(self, o):
        ch = False
        for mine, oth in ((self.vm, o.vm), (self.lg, o.lg)):
            for k, v in oth.items():
                if k not in mine or mine[k] > v:
                    mine[k] = v; ch = True
        if o.smem and not self.smem:
            self.smem = True; ch = True
        have = {id(i): d for i, d in self.hist}
        for i, d in o.hist:
            if id(i) not in have or have[id(i)] > d:
                self.hist = [(a, b) for a, b in self.hist if a is not i] + [(i, d)]; ch = True
        return ch


WAIT_RE = re.compile(r"(vmcnt|lgkmcnt|expcnt)\((\d+)\)")


def apply_wait(st, vm, lg):
    if vm is not None:
        st.vm = {k: v for k, v in st.vm.items() if v < vm}
    if lg is not None:
        if lg == 0:
            st.lg = {}; st.smem = False
        elif not st.smem:
            st.lg = {k: v for k, v in st.lg.items() if v < lg}


def advance(st, ins):
    n = ins.nwait
    st.hist = [(a, d + n) for a, d in st.hist if d + n < 14]
    if ins.kind in ("mfma", "valu", "trans", "salu") or (ins.kind == "vstore" and ins.wide_store):
        st.hist.append((ins, 0))


def process(prog):
    entry = {}
    for _ in range(12):
        out, st, changed, live = [], State(), False, True
        for ins in prog:
            if ins.kind == "label":
                if ins.target in entry:
                    if live:
                        st.merge(entry[ins.target])
                    else:
                        st = entry[ins.target].copy()
                elif not live:
                    st = State()
                live = True
                out.append(ins.text); continue
            if ins.kind == "dir":
                out.append(ins.text); continue
            if ins.kind == "wait":
                d = {k: int(v) for k, v in WAIT_RE.findall(ins.text)}
                apply_wait(st, d.get("vmcnt"), d.get("lgkmcnt"))
                advance(st, ins); out.append(ins.text); continue
            touch = ins.rd | ins.wr
            keys = [("r", r) for r in touch] + [("pw", p) for p in (ins.pr | ins.pw)] + [("pr", p) for p in ins.pw]
            vkeys = keys
            if ins.is_vmem():
                vkeys = [k for k in keys if not (k[0] == "pw" and k[1] not in ins.pr)]
            vm = min((st.vm[k] for k in vkeys if k in st.vm), default=None)
            lgk = [k for k in keys if k in st.lg]
            if ins.kind in ("dsread", "dswrite"):
                lgk = [k for k in lgk if k[0] == "r"]
                if ins.kind == "dsread" and not st.smem:
                    lgk = [k for k in lgk if k[1] in ins.rd]
            if ins.kind == "vload":
                vk = [k for k in vkeys if k in st.vm and not (k[0] == "r" and k[1] in ins.wr and k[1] not in ins.rd)]
                vm = min((st.vm[k] for k in vk), default=None)
            lg = min((st.lg[k] for k in lgk), default=None)
            if lg is not None and st.smem:
                lg = 0
            if vm is not None or lg is not None:
                parts = []
                if vm is not None: vm = min(vm, 63); parts.append(f"vmcnt({vm})")
                if lg is not None: lg = min(lg, 15); parts.append(f"lgkmcnt({lg})")
                w = Ins("s_waitcnt " + " ".join(parts))
                apply_wait(st, vm, lg); advance(st, w); out.append(w.text)
            need = max((hazard_need(p, ins) - d for p, d in st.hist), default=0)
            if need > 0:
                w = Ins(f"s_nop {need - 1}"); advance(st, w); out.append(w.text)
            if ins.is_vmem():
                for k in st.vm: st.vm[k] += 1
                for r in ins.wr: st.vm[("r", r)] = 0
                for p in ins.pw: st.vm[("pw", p)] = 0
                for p in ins.pr: st.vm[("pr", p)] = 0
            elif ins.kind in ("dsread", "dswrite", "smem"):
                for k in st.lg: st.lg[k] += 1
                for r in ins.wr: st.lg[("r", r)] = 0
                for p in ins.pw: st.lg[("pw", p)] = 0
                for p in ins.pr: st.lg[("pr", p)] = 0
                if ins.kind == "smem": st.smem = True
            advance(st, ins)
            out.append(ins.text)
            if ins.kind == "branch":
                t = ins.target
                if t not in entry:
                    entry[t] = st.copy(); changed = True
                elif entry[t].merge(st):
                    changed = True
                if ins.op == "s_branch": live = False
            if ins.kind == "end": live = False
        if not changed:
            return out
    raise RuntimeError("waitcnt fixpoint did not converge")


class Gen:
    def __init__(self):
        self.stack = [[]]
        self.nlab = 0

    def __call__(self, text, pr=(), pw=(), tag=None):
        for line in text.strip().split("\n"):
            line = line.split("//")[0].strip()
            if line:
                self.stack[-1].append(Ins(line, pr, pw, tag))

    def emit(self, lst):
        self.stack[-1].extend(lst)

    def label(self, stem="L"):
        self.nlab += 1
        return f"{stem}_{self.nlab}"

    def cap(self, fn, *a, **k):
        self.stack.append([])
        fn(*a, **k)
        return self.stack.pop()

    def lines(self):
        return process(self.stack[0])


def weave(main, fill, per, start=0, is_anchor=lambda i: i.kind == "mfma"):
    out, k, acc, na = [], 0, 0.0, 0
    for i in main:
        out.append(i)
        if is_anchor(i):
            na += 1
            if na > start:
                acc += per
                while acc >= 1 and k < len(fill):
                    out.append(fill[k]); k += 1; acc -= 1
    out.extend(fill[k:])
    return out


class Alloc:
    def __init__(self, cls, lo, hi):
        self.cls, self.free_ = cls, set(range(lo, hi))

    def get(self, n=1, align=None):
        align = align or (2 if n > 1 else 1)
        for s in sorted(self.free_):
            if s % align == 0 and all(s + i in self.free_ for i in range(n)):
                for i in range(n): self.free_.discard(s + i)
                return Reg(self.cls, s, n)
        raise RuntimeError(f"out of {self.cls} registers for {n}")

    def put(self, *rs):
        for r in rs:
            for i in range(r.n):
                assert r.i + i not in self.free_
                self.free_.add(r.i + i)


class Reg:
    def __init__(self, cls, i, n=1):
        self.cls, self.i, self.n = cls, i, n

    def __str__(self):
        return f"{self.cls}{self.i}" if self.n == 1 else f"{self.cls}[{self.i}:{self.i + self.n - 1}]"

    def __getitem__(self, k):
        if isinstance(k, slice):
            a = k.start or 0
            b = self.n if k.stop is None else k.stop
            assert 0 <= a < b <= self.n
            return Reg(self.cls, self.i + a, b - a)
        assert 0 <= k < self.n
        return Reg(self.cls, self.i + k, 1)
```
